```python
import torch

def _softmax(x, axis=-1):
    return torch.softmax(x, dim=axis)
def _gelu(x):
    return torch.nn.functional.gelu(x, approximate="tanh")
def _silu(x):
    return torch.nn.functional.silu(x)
def _sigmoid(x):
    return torch.sigmoid(x)
def _layernorm(x, axis=-1, eps=1e-5):
    m = x.mean(dim=axis, keepdim=True)
    v = x.var(dim=axis, keepdim=True, unbiased=False)
    return (x - m) / torch.sqrt(v + eps)
def _scatter_add(tgt, idx, src, axis=0):
    return tgt.clone().index_add_(axis, idx, src)
def _segment_sum(src, seg, n):
    out = torch.zeros((n,) + src.shape[1:], dtype=src.dtype)
    return out.index_add_(0, seg, src)
def _pad(x, pw):
    flat = tuple(v for pair in reversed(pw) for v in pair)
    return torch.nn.functional.pad(x, flat)

kernel_name = 'parallel_sum__sliding_block_cached__geglu_ffn__decode'

def setup_inputs():

    _w = (lambda a: (lambda t: t.to(torch.bfloat16) if t.is_floating_point() else t)(torch.as_tensor(a)))
    def _A_setup():
        B, Sq, D = 2, 1, 448
        Hq, Hkv, Sk, Dh = 16, 8, 32768, 256
        assert Hq % Hkv == 0, (Hq, Hkv)
        return {
            "x": _w((lambda *s: torch.randn(*s, dtype=torch.bfloat16) * 0.05)(B, Sq, D)),
            "k_cache": _w((lambda *s: torch.randn(*s, dtype=torch.bfloat16) * 3.2)(B, Hkv, Sk, Dh)),
            "v_cache": _w((lambda *s: torch.randn(*s, dtype=torch.bfloat16) * 1.6)(B, Hkv, Sk, Dh)),
            "wq": _w((lambda *s: torch.randn(*s, dtype=torch.bfloat16) * 3.2)(D, Hq * Dh) * (D ** -0.5)),
            "wo": _w((lambda *s: torch.randn(*s, dtype=torch.bfloat16) * 1.6)(Hq * Dh, D) * ((Hq * Dh) ** -0.5)),
        }
    _A_in = _A_setup()

    def _B_setup():
        B, S, D, F = 2, 1, 448, 1792
        return {
            "x": _w((lambda *s: torch.randn(*s, dtype=torch.bfloat16) * 0.05)(B, S, D)),
            "w_gate": _w((lambda *s: torch.randn(*s, dtype=torch.bfloat16) * 0.05)(D, F)),
            "w_up": _w((lambda *s: torch.randn(*s, dtype=torch.bfloat16) * 0.05)(D, F)),
            "w_down": _w((lambda *s: torch.randn(*s, dtype=torch.bfloat16) * 0.05)(F, D)),
        }
    _B_in = _B_setup()

    return {
        "A_x": _A_in["x"],
        "A_k_cache": _A_in["k_cache"],
        "A_v_cache": _A_in["v_cache"],
        "A_wq": _A_in["wq"],
        "A_wo": _A_in["wo"],
        "B_x": _B_in["x"],
        "B_w_gate": _B_in["w_gate"],
        "B_w_up": _B_in["w_up"],
        "B_w_down": _B_in["w_down"],
    }

def reference(A_x, A_k_cache, A_v_cache, A_wq, A_wo, B_x, B_w_gate, B_w_up, B_w_down):
    def _A_ref(x, k_cache, v_cache, wq, wo):
        B, Sq, D = x.shape
        Hq, Dh = 16, 256
        Hkv, Sk = k_cache.shape[1], k_cache.shape[2]
        W = min(4096, max(256, Sk // 4))
        rep = Hq // Hkv
        q = (lambda x, *d: x.permute(*d))((x @ wq).reshape(B, Sq, Hq, Dh), 0, 2, 1, 3)
        k = (lambda x, n, axis: torch.repeat_interleave(x, n, dim=axis))(k_cache[:, :, Sk - W:, :], rep, axis=1)
        v = (lambda x, n, axis: torch.repeat_interleave(x, n, dim=axis))(v_cache[:, :, Sk - W:, :], rep, axis=1)
        scores = torch.einsum("bhqd,bhkd->bhqk", q, k) * (Dh ** -0.5)
        p = _softmax(scores, axis=-1)
        o = torch.einsum("bhqk,bhkd->bhqd", p, v)
        return (lambda x, *d: x.permute(*d))(o, 0, 2, 1, 3).reshape(B, Sq, Hq * Dh) @ wo

    def _B_ref(x, w_gate, w_up, w_down):
        return (_gelu(x @ w_gate) * (x @ w_up)) @ w_down

    x = A_x
    xn = _layernorm(x, axis=-1)
    return x + _A_ref(xn, A_k_cache, A_v_cache, A_wq, A_wo) + _B_ref(xn, B_w_gate, B_w_up, B_w_down)
```

```python
NAME = "parallel_sum__sliding_block_cached__geglu_ffn__decode"
class Asm:
    def __init__(s):
        s.lines = []
        s.nlab = 0
    def __call__(s, txt):
        for l in txt.strip("\n").split("\n"):
            s.lines.append(l)
    def lab(s, base="L"):
        s.nlab += 1
        return f"{base}_{s.nlab}"
    def text(s):
        return "\n".join(s.lines) + "\n"

def header(grid, block, lds):
    return f"; @launch grid=({grid},1,1) block=({block},1,1) lds={lds}\n" + \
f""".amdgcn_target "amdgcn-amd-amdhsa--gfx950"
.text
.globl {NAME}_kernel
.p2align 8
.type {NAME}_kernel,@function
{NAME}_kernel:
"""
def footer(vgpr, sgpr=102, accum=None):
    if accum is None:
        accum = (vgpr + 3) // 4 * 4
    return f"""
.section .rodata,"a"
.p2align 6
.amdhsa_kernel {NAME}_kernel
  .amdhsa_next_free_vgpr {vgpr}
  .amdhsa_next_free_sgpr {sgpr}
  .amdhsa_accum_offset {accum}
  .amdhsa_group_segment_fixed_size 0
  .amdhsa_kernarg_size 96
  .amdhsa_user_sgpr_count 2
  .amdhsa_user_sgpr_kernarg_segment_ptr 1
  .amdhsa_system_sgpr_workgroup_id_x 1
  .amdhsa_float_denorm_mode_32 3
.end_amdhsa_kernel
"""
```

```python
import re
TRANS = re.compile(r"v_(exp|log|rcp|rsq|sqrt|sin|cos)_f(16|32)")
def regs(tok):
    tok = tok.strip()
    m = re.fullmatch(r"-?\|?([vsa])(\d+)\|?", tok)
    if m: return [(m.group(1), int(m.group(2)))]
    m = re.fullmatch(r"-?([vsa])\[(\d+):(\d+)\]", tok)
    if m: return [(m.group(1), k) for k in range(int(m.group(2)), int(m.group(3)) + 1)]
    if tok == "vcc": return [("s", "vcc")]
    if tok in ("m0", "exec", "exec_lo", "exec_hi"): return [("x", tok[:4])]
    return []
class I:
    def __init__(s, line):
        s.line = line
        t = line.split(";")[0].strip()
        s.label = t.endswith(":")
        s.empty = (t == "" or t.startswith("."))
        s.op = ""; s.ops = []; s.mods = ""
        s.d = set(); s.u = set()
        if s.label or s.empty: return
        p = t.split(None, 1)
        s.op = p[0]
        rest = p[1] if len(p) > 1 else ""
        parts = [x.strip() for x in re.split(r",(?![^\[]*\])", rest)] if rest else []
        if parts:
            last = parts[-1].split(None, 1)
            parts[-1] = last[0]; s.mods = last[1] if len(last) > 1 else ""
        s.ops = parts
        op = s.op
        s.valu = op.startswith("v_") and not op.startswith("v_mfma") and not op.startswith("v_smfmac")
        s.mfma = op.startswith("v_mfma")
        s.vmem = op.startswith("buffer_") or op.startswith("global_")
        s.ds = op.startswith("ds_")
        s.dpp = "_dpp" in op or "quad_perm" in s.mods or "row_" in s.mods
        s.trans = bool(TRANS.match(op))
        s.perml = op.startswith("v_permlane")
        s.rdlane = op.startswith("v_readlane") or op.startswith("v_readfirstlane")
        R = [regs(x) for x in parts]
        flat = lambda L: set(x for r in L for x in r)
        if s.mfma:
            s.d = set(R[0]); s.ab = flat(R[1:3]); s.c = set(R[3]); s.u = s.ab | s.c
        elif s.perml:
            s.d = flat(R[:2]); s.u = flat(R[:2])
        elif s.valu:
            s.d = set(R[0]); s.u = flat(R[1:])
            if op.startswith(("v_fmac", "v_dot2c", "v_writelane")) or s.dpp and False: s.u |= set(R[0])
            if op.startswith("v_cndmask") and len(parts) == 3: s.u.add(("s", "vcc"))
            if re.match(r"v_(add|sub|subrev|addc|subb)_co", op): s.d |= set(R[1])
        elif s.vmem:
            lds = re.search(r"\blds\b", s.mods) is not None
            s.lds = lds
            if "load" in op and not lds:
                s.d = set(R[0]); s.u = flat(R[1:])
            else:
                s.u = flat(R)
                if "atomic" in op and "sc0" in s.mods: s.d = set(R[0])
            s.wide_store = ("store_dwordx4" in op or "store_dwordx3" in op)
            s.data = set(R[0]) if s.wide_store else set()
        elif s.ds:
            if op.startswith("ds_read") or op.startswith("ds_bpermute") or op.startswith("ds_swizzle"):
                s.d = set(R[0]); s.u = flat(R[1:])
            else:
                s.u = flat(R)
        elif op.startswith("s_"):
            if op.startswith(("s_cmp", "s_cbranch", "s_branch", "s_waitcnt", "s_nop", "s_barrier", "s_endpgm", "s_setprio", "s_sleep")):
                s.u = flat(R)
            else:
                s.d = set(R[0]) if R else set(); s.u = flat(R[1:])
    def states(s):
        if s.label or s.empty: return 0
        if s.op == "s_nop": return int(s.ops[0], 0) + 1
        return 1
def need(p, c):
    if p.label or p.empty or c.label or c.empty: return 0
    n = 0
    vd = lambda S: set(x for x in S if x[0] in "va")
    sd = lambda S: set(x for x in S if x[0] == "s")
    if p.valu:
        w = vd(p.d)
        if c.valu and c.dpp and (w & c.u): n = max(n, 2)
        if c.valu and c.perml and (w & c.u): n = max(n, 2)
        if c.mfma and (w & c.u): n = max(n, 2)
        if c.valu and c.rdlane and (w & c.u): n = max(n, 1)
        if p.trans and c.valu and not c.trans and (w & (c.u | c.d)): n = max(n, 1)
        if p.trans and (c.vmem or c.ds) and (w & c.u): n = max(n, 1)
        sw = sd(p.d)
        if sw and c.vmem and (sw & c.u): n = max(n, 5)
        if sw and c.valu and (sw & c.u):
            n = max(n, 4 if (c.op.startswith("v_readlane") or c.op.startswith("v_writelane")) and (sw & set(regs(c.ops[2]))) else 2)
    if p.mfma:
        passes = 8 if "32x32" in p.op else 4
        big = {4: 8, 8: 12}[passes]
        if c.mfma:
            if p.d & c.ab: n = max(n, big)
            if (p.d & c.c) and p.d != c.c: n = max(n, {4: 6, 8: 10}[passes])
        elif (c.valu or c.vmem or c.ds):
            if p.d & (c.u | c.d): n = max(n, big)
            if c.valu and (p.c & c.d): n = max(n, {4: 3, 8: 7}[passes])
    if p.vmem and getattr(p, "wide_store", False):
        if c.valu and (p.data & c.d): n = max(n, 2)
        elif (p.data & c.d): n = max(n, 1)
    if p.op.startswith("s_") and ("x", "m0") in p.d and c.vmem and getattr(c, "lds", False): n = max(n, 1)
    return n
def fix(text, window=16):
    lines = text.split("\n")
    ins = [I(l) for l in lines]
    labels = {}
    for k, i in enumerate(ins):
        if i.label: labels[i.line.split(";")[0].strip()[:-1]] = k
    out = []
    added = 0
    def required(hist, c):
        dist = 0; req = 0
        for p in reversed(hist):
            if p.op in ("s_endpgm", "s_branch"): break
            r = need(p, c) - dist
            req = max(req, r)
            dist += p.states()
            if dist >= window: break
        return req
    for i in ins:
        if not (i.label or i.empty):
            r = required(out, i)
            if r > 0:
                out.append(I(f"  s_nop {r-1}")); added += 1
        out.append(i)
    labels = {}
    for k, i in enumerate(out):
        if i.label: labels[i.line.split(";")[0].strip()[:-1]] = k
    problems = []
    for k, i in enumerate(out):
        if i.op.startswith("s_cbranch") or i.op == "s_branch":
            tgt = labels.get(i.ops[0])
            if tgt is None: continue
            hist = out[:k + 1]
            if i.op == "s_branch": hist = out[:k] + [I("  s_nop 0")]
            path = []
            dist = 0
            for c in out[tgt:]:
                if c.label or c.empty: continue
                r = required(hist + path, c)
                if r > 0: problems.append((i.line.strip(), c.line.strip(), r))
                path.append(c); dist += c.states()
                if dist >= window or c.op in ("s_endpgm", "s_branch"): break
    return "\n".join(i.line for i in out), added, problems
```

```python
import sys
from asmlib import Asm, NAME
import hazard

WIN = 28672 * 512
EPOCH, QMB, XMB, FMB, ML, MB1, MB2 = 0, 0x1000, 0x41000, 0x42000, 0x5E000, 0x60000, 0xE0000
ST2 = 4096 + 256
STAMP = 0x200000
QB, HS = 131072, 576
MXB, LB, MODE, LNB = 132352, 132416, 132480, 132608
OB, TB = 0, 16384
LDS = 138240
OOB = 0x7fff0000
MAXSPIN = 60000
DPPF = "row_mask:0xf bank_mask:0xf"
X1, X2, X4, X8 = "quad_perm:[1,0,3,2]", "quad_perm:[2,3,0,1]", "row_half_mirror", "row_mirror"

HEADER = """; Fused decode step, one launch: LayerNorm -> q projection -> sliding-window attention (last 4096 keys, GQA 16/8,
"""

class G(Asm):
    def __init__(s, nth=3, stamps=False, ntflag="nt"):
        super().__init__()
        s.nth, s.stamps, s.nt = nth, stamps, ntflag
        s.nst = 0
    def stamp(s, idx, wait=False):
        if s.stamps:
            s(f"  s_memrealtime s[{64+2*idx}:{65+2*idx}]")
            if wait: s("  s_waitcnt lgkmcnt(0)")
    def dump(s):
        if not s.stamps: return
        s("  s_waitcnt lgkmcnt(0)\n  s_mov_b64 exec, -1\n  v_mov_b32 v1, 0")
        for k in range(12):
            s(f"  v_writelane_b32 v1, s{64+2*k}, {k}")
        s(f"""
  s_getreg_b32 s62, hwreg(HW_REG_XCC_ID)
  v_writelane_b32 v1, s62, 12
  v_writelane_b32 v1, s63, 13
  s_lshl_b32 s62, s2, 4
  s_add_u32 s62, s62, s3
  s_lshl_b32 s62, s62, 6
  s_add_u32 s62, s62, {STAMP}
  v_lshlrev_b32 v2, 2, v0
  s_mov_b64 exec, 0xffff
  buffer_store_dword v1, v2, s[40:43], s62 offen""")
    def end(s):
        s.dump()
        s("  s_endpgm")
    def tags(s):
        s("""
  s_mul_i32 s44, s44, 1664525
  s_add_u32 s44, s44, 1013904223
  s_not_b32 s45, s44""")
    def tagbytes(s, r):
        s(f"""
  s_and_b32 s46, s44, 0xff
  v_mov_b32 v{r}, s46
  s_bfe_u32 s46, s44, 0x80008
  v_mov_b32 v{r+1}, s46
  s_bfe_u32 s46, s44, 0x80010
  v_mov_b32 v{r+2}, s46
  s_lshr_b32 s46, s44, 24
  v_mov_b32 v{r+3}, s46
  s_mov_b32 s47, 0xffffff00""")
    def put_tag(s, dst, src, tb):
        for k in range(4):
            s(f"  v_and_or_b32 v{dst+k}, v{src+k}, s47, v{tb+k}")
    def check_tag(s, acc, src, tb, first):
        for k in range(4):
            if first and k == 0:
                s(f"  v_xor_b32 v{acc}, v{src}, v{tb}")
            else:
                s(f"  v_bitop3_b32 v{acc}, v{acc}, v{src+k}, v{tb+k} bitop3:0xf6")
    def spin_tail(s, acc, lab, done, mask=True):
        if mask: s(f"  v_and_b32 v{acc}, 0xff, v{acc}")
        s(f"""
  v_cmp_ne_u32 vcc, 0, v{acc}
  s_cbranch_vccz {done}
  s_add_u32 s63, s63, 1
  s_cmp_lt_u32 s63, {MAXSPIN}
  s_cbranch_scc1 {lab}
{done}:""")
    def masks(s, m, t1, t2):
        s(f"""
  v_and_b32 v{t1}, 1, v0
  v_lshlrev_b32 v{t1}, 4, v{t1}
  v_mov_b32 v{t2}, 0xffff
  v_lshlrev_b32 v{t1}, v{t1}, v{t2}
  s_mov_b32 s48, 0x03030303
  s_mov_b32 s49, 0x03030303""")
        for d in range(4):
            s(f"  v_cndmask_b32 v{m+d}, 0, v{t1}, s[48:49]")
            if d < 3: s("  s_lshl_b64 s[48:49], s[48:49], 2")
    def frag(s, dst, both, m):
        for d in range(4):
            s(f"  v_and_b32 v{dst+d}, v{both}, v{m+d}")
    def xswap(s, op, v, t, which):
        s(f"  v_mov_b32 v{t}, v{v}\n  v_permlane{which}_swap_b32 v{v}, v{t}\n  {op} v{v}, v{v}, v{t}")
    def xswap_many(s, op, vs, ts, which):
        for v, t in zip(vs, ts): s(f"  v_mov_b32 v{t}, v{v}")
        for v, t in zip(vs, ts): s(f"  v_permlane{which}_swap_b32 v{v}, v{t}")
        for v, t in zip(vs, ts): s(f"  {op} v{v}, v{v}, v{t}")
    def dpp(s, op, vs, ctrl):
        for v in vs: s(f"  {op}_dpp v{v}, v{v}, v{v} {ctrl} {DPPF}")

def unit_role(g):
    nt = g.nt
    g(f"""
L_unit:
  s_load_dwordx2 s[12:13], s[0:1], 0
  s_mov_b32 s14, 1792
  s_mov_b32 s15, 0x20000
  s_mov_b32 s11, 0x20000
  s_cmp_lg_u32 s3, 0
  s_cbranch_scc1 L_unit_ffn
  s_load_dwordx2 s[8:9], s[0:1], 24
  s_mov_b32 s10, {448*8192}
  s_mov_b32 s16, 8192
  s_and_b32 s17, s5, 7
  s_lshr_b32 s18, s5, 3          ; k part
  s_lshl_b32 s19, s4, 10
  s_lshl_b32 s20, s17, 7
  s_add_u32 s19, s19, s20
  s_branch L_unit_go
L_unit_ffn:
  s_bitcmp1_b32 s4, 0
  s_cbranch_scc1 L_exit
  s_cmp_ge_u32 s5, 28
  s_cbranch_scc1 L_exit
  s_mov_b32 s10, {448*3584}
  s_mov_b32 s16, 3584
  s_mov_b32 s17, s5
  s_lshr_b32 s18, s4, 1
  s_lshl_b32 s19, s17, 7
  s_cmp_lg_u32 s3, 1
  s_cbranch_scc1 L_unit_up
  s_load_dwordx2 s[8:9], s[0:1], 48
  s_branch L_unit_go
L_unit_up:
  s_load_dwordx2 s[8:9], s[0:1], 56
L_unit_go:
  s_mul_i32 s20, s16, 112
  s_mul_i32 s20, s20, s18
  s_add_u32 s19, s19, s20
  s_mul_i32 s21, s16, 14
  v_lshrrev_b32 v3, 3, v0
  v_mul_lo_u32 v2, v3, s21
  v_and_b32 v4, 7, v0
  v_lshl_add_u32 v2, v4, 4, v2
  v_lshlrev_b32 v5, 4, v0
  v_mov_b32 v6, {OOB}
  v_cmp_gt_u32 vcc, 56, v0
  v_cndmask_b32 v5, v6, v5, vcc  ; x voffset
  s_waitcnt lgkmcnt(0)
  buffer_load_dwordx4 v[8:11], v5, s[12:15], 0 offen
  buffer_load_dwordx4 v[12:15], v5, s[12:15], 0 offen offset:896
  s_load_dword s44, s[40:41], {EPOCH}""")
    for n in range(14):
        g(f"  buffer_load_dwordx4 v[{64+4*n}:{67+4*n}], v2, s[8:11], s19 offen {nt}")
        if n < 13: g("  s_add_u32 s19, s19, s16")
    g.stamp(1)
    g("  s_waitcnt vmcnt(14)")
    g.stamp(2)
    for b in range(2):
        for k in range(4):
            g(f"  v_lshlrev_b32 v{16+8*b+2*k}, 16, v{8+4*b+k}")
            g(f"  v_and_b32 v{17+8*b+2*k}, 0xffff0000, v{8+4*b+k}")
    for b in range(2):
        x = 16 + 8 * b
        g(f"""
  v_add_f32 v{32+b}, v{x}, v{x+1}
  v_add_f32 v{34+b}, v{x+2}, v{x+3}
  v_add_f32 v{36+b}, v{x+4}, v{x+5}
  v_add_f32 v{38+b}, v{x+6}, v{x+7}""")
    for b in range(2):
        g(f"  v_add_f32 v{32+b}, v{32+b}, v{34+b}\n  v_add_f32 v{36+b}, v{36+b}, v{38+b}")
    g("  v_add_f32 v32, v32, v36\n  v_add_f32 v33, v33, v37")
    def wave_sum(vs, ts):
        for c in (X1, X2, X4, X8): g.dpp("v_add_f32", vs, c)
        g.xswap_many("v_add_f32", vs, ts, 16)
        g.xswap_many("v_add_f32", vs, ts, 32)
    wave_sum([32, 33], [34, 35])
    g(f"""
  v_mul_f32 v32, {1/448:.10e}, v32
  v_mul_f32 v33, {1/448:.10e}, v33
  v_mov_b32 v36, 0
  v_mov_b32 v37, 0
  s_mov_b32 exec_hi, 0x00ffffff""")
    for k in range(8):
        g(f"""
  v_sub_f32 v38, v{16+k}, v32
  v_sub_f32 v39, v{24+k}, v33
  v_fmac_f32 v36, v38, v38
  v_fmac_f32 v37, v39, v39""")
    g("  s_mov_b32 exec_hi, -1")
    wave_sum([36, 37], [34, 35])
    g(f"""
  v_mul_f32 v36, {1/448:.10e}, v36
  v_mul_f32 v37, {1/448:.10e}, v37
  v_cvt_pk_bf16_f32 v34, v36, v37      ; var
  v_cvt_pk_bf16_f32 v35, v32, v33      ; mean
  v_lshlrev_b32 v36, 16, v34
  v_and_b32 v37, 0xffff0000, v34
  v_lshlrev_b32 v32, 16, v35
  v_and_b32 v33, 0xffff0000, v35
  v_add_f32 v36, 0x3727c5ac, v36       ; + 1e-5
  v_add_f32 v37, 0x3727c5ac, v37
  v_cvt_pk_bf16_f32 v34, v36, v37
  v_lshlrev_b32 v36, 16, v34
  v_and_b32 v37, 0xffff0000, v34
  v_sqrt_f32 v36, v36
  v_sqrt_f32 v37, v37
  s_nop 0
  v_cvt_pk_bf16_f32 v34, v36, v37
  v_lshlrev_b32 v36, 16, v34
  v_and_b32 v37, 0xffff0000, v34       ; denominators
  v_rcp_f32 v38, v36
  v_rcp_f32 v39, v37""")
    for b in range(2):
        x = 16 + 8 * b
        for k in range(8): g(f"  v_sub_f32 v{x+k}, v{x+k}, v{32+b}")
        for k in range(4):
            g(f"  v_cvt_pk_bf16_f32 v{40+k}, v{x+2*k}, v{x+2*k+1}")
        for k in range(4):
            g(f"  v_lshlrev_b32 v{x+2*k}, 16, v{40+k}\n  v_and_b32 v{x+2*k+1}, 0xffff0000, v{40+k}")
        for k in range(8): g(f"  v_mul_f32 v{44+k}, v{x+k}, v{38+b}")
        for k in range(8): g(f"  v_fma_f32 v{x+k}, -v{44+k}, v{36+b}, v{x+k}")
        for k in range(8): g(f"  v_fmac_f32 v{44+k}, v{x+k}, v{38+b}")
        for k in range(4):
            g(f"  v_cvt_pk_bf16_f32 v{8+4*b+k}, v{44+2*k}, v{45+2*k}")
    g(f"""
  s_mul_i32 s21, s3, 1792
  s_add_u32 s21, s21, {LNB}
  v_lshl_add_u32 v5, v0, 4, s21
  s_mov_b32 exec_hi, 0x00ffffff
  ds_write_b128 v5, v[8:11]
  ds_write_b128 v5, v[12:15] offset:896
  s_mov_b32 exec_hi, -1
  s_mul_i32 s22, s18, 224
  s_add_u32 s21, s21, s22
  v_mul_u32_u24 v5, 28, v3
  v_add_u32 v5, s21, v5
  s_waitcnt lgkmcnt(0)""")
    for b in range(2):
        o = 224 * b
        g(f"""
  ds_read2_b32 v[{32+8*b}:{33+8*b}], v5 offset0:{o} offset1:{o+1}
  ds_read2_b32 v[{34+8*b}:{35+8*b}], v5 offset0:{o+2} offset1:{o+3}
  ds_read2_b32 v[{36+8*b}:{37+8*b}], v5 offset0:{o+4} offset1:{o+5}
  ds_read_b32 v{38+8*b}, v5 offset:{(o+6)*4}""")
    g.masks(48, 52, 53)
    g.tags()
    g("""
  s_mov_b32 s22, 0x01000100
  s_mov_b32 s23, 0x03020302
  s_waitcnt lgkmcnt(0)""")
    g.stamp(3)
    for n in range(14):
        for b in range(2):
            g(f"  v_perm_b32 v{52+b}, v{32+8*b+n//2}, v{32+8*b+n//2}, s{22+(n&1)}")
        for b in range(2):
            g.frag(56 + 4 * b, 52 + b, 48)
        g(f"  s_waitcnt vmcnt({13-n})")
        for b in range(2):
            c = "0" if n == 0 else f"v[{120+4*b}:{123+4*b}]"
            g(f"  v_mfma_f32_16x16x32_bf16 v[{120+4*b}:{123+4*b}], v[{56+4*b}:{59+4*b}], v[{64+4*n}:{67+4*n}], {c}")
    g.stamp(4)
    g("""
  v_lshrrev_b32 v5, 5, v0        ; batch
  v_bfe_u32 v6, v0, 4, 1         ; half
  v_lshlrev_b32 v6, 7, v6
  v_lshl_add_u32 v6, v4, 4, v6""")
    for k in range(4):
        g(f"  v_permlane32_swap_b32 v{120+k}, v{124+k}")
    g(f"""
  s_cmp_lg_u32 s3, 0
  s_cbranch_scc1 L_unit_pub_ffn
  v_mov_b32 v58, s44
  v_mov_b32 v59, s45
  v_mov_b32 v62, s44
  v_mov_b32 v63, s45
  v_add_f32_dpp v56, v124, v120 row_ror:8 {DPPF}
  v_add_f32_dpp v57, v125, v121 row_ror:8 {DPPF}
  v_add_f32_dpp v60, v126, v122 row_ror:8 {DPPF}
  v_add_f32_dpp v61, v127, v123 row_ror:8 {DPPF}
  v_lshl_add_u32 v6, v5, 14, v6
  s_lshl_b32 s21, s4, 15
  s_lshl_b32 s22, s18, 12
  s_add_u32 s21, s21, s22
  s_lshl_b32 s22, s17, 9
  s_add_u32 s21, s21, s22
  s_add_u32 s21, s21, {QMB}
  s_getreg_b32 s22, hwreg(HW_REG_XCC_ID, 0, 4)
  v_mov_b32 v8, s22
  v_mov_b32 v9, s44
  v_mov_b32 v10, s45
  v_mov_b32 v11, s44
  s_lshl_b32 s23, s4, 9
  s_add_u32 s23, s23, {XMB}
  s_lshl_b32 s24, s5, 4
  s_add_u32 s24, s24, s23
  v_mov_b32 v7, 0
  s_mov_b32 exec_lo, 0x00ff00ff
  s_mov_b32 exec_hi, 0x00ff00ff
  buffer_store_dwordx4 v[56:59], v6, s[40:43], s21 offen sc1
  buffer_store_dwordx4 v[60:63], v6, s[40:43], s21 offen offset:256 sc1
  s_mov_b64 exec, 1
  buffer_store_dwordx4 v[8:11], v7, s[40:43], s24 offen sc1
  s_mov_b64 exec, -1
  s_lshl_b32 s21, s4, 15
  s_lshr_b32 s24, s5, 4
  s_lshl_b32 s24, s24, 14
  s_add_u32 s21, s21, s24
  s_add_u32 s24, s21, {QMB}
  s_add_u32 s25, s24, 4096
  s_add_u32 s26, s24, 8192
  s_add_u32 s27, s24, 12288
  v_lshlrev_b32 v2, 4, v0
  v_and_b32 v3, 31, v0
  v_lshlrev_b32 v3, 4, v3
  v_lshlrev_b32 v7, 7, v5
  v_lshl_add_u32 v7, v4, 4, v7
  v_bfe_u32 v6, v0, 3, 1
  v_lshl_add_u32 v7, v6, 3, v7
  v_bfe_u32 v6, v0, 4, 1
  v_lshl_add_u32 v7, v6, 2, v7
  v_add_u32 v7, {QB}, v7
  s_mov_b32 s63, 0
  s_waitcnt vmcnt(0)""")
    g.stamp(5)
    g("L_qpoll:")
    for n in range(16):
        g(f"  buffer_load_dwordx4 v[{64+4*n}:{67+4*n}], v2, s[40:43], s{24+n//4} offen offset:{(n&3)*1024} sc1")
    g(f"  buffer_load_dwordx4 v[12:15], v3, s[40:43], s23 offen sc1")
    g("  v_mov_b32 v16, s44\n  v_mov_b32 v17, s45")
    for n in range(16):
        g(f"  s_waitcnt vmcnt({16-n})")
        if n == 0: g("  v_xor_b32 v18, v66, v16")
        else: g(f"  v_bitop3_b32 v18, v18, v{66+4*n}, v16 bitop3:0xf6")
        g(f"  v_bitop3_b32 v18, v18, v{67+4*n}, v17 bitop3:0xf6")
    g("""
  s_waitcnt vmcnt(0)
  v_bitop3_b32 v18, v18, v13, v16 bitop3:0xf6
  v_bitop3_b32 v18, v18, v14, v17 bitop3:0xf6""")
    g.spin_tail(18, "L_qpoll", "L_qgot", mask=False)
    g.stamp(6)
    for qd in range(4):
        for j in range(2):
            r = 64 + 4 * qd + j
            g(f"  v_add_f32 v{r}, v{r}, v{r+16}\n  v_add_f32 v{r+32}, v{r+32}, v{r+48}")
    for qd in range(4):
        for j in range(2):
            r = 64 + 4 * qd + j
            g(f"  v_add_f32 v{r}, v{r}, v{r+32}")
    for qd in range(4):
        g(f"  v_cvt_pk_bf16_f32 v{20+qd}, v{64+4*qd}, v{65+4*qd}")
    for qd in range(4):
        g(f"  ds_write_b32 v7, v{20+qd} offset:{(qd>>1)*HS + (qd&1)*256}")
    g(f"""
  v_readfirstlane_b32 s21, v12
  v_mov_b32 v9, {MODE}
  v_cmp_ne_u32 vcc, s21, v12
  s_cmp_eq_u64 vcc, 0
  s_cselect_b32 s21, 1, 0
  v_mov_b32 v8, s21
  ds_write_b32 v9, v8
  s_waitcnt lgkmcnt(0)""")
    g.stamp(7)
    g("  s_barrier                      ; S1")
    g.end()
    g("L_unit_pub_ffn:")
    g.tagbytes(56)
    for k in range(4):
        g(f"  v_add_f32_dpp v{120+k}, v{124+k}, v{120+k} row_ror:8 {DPPF}")
    g(f"""
  v_mul_u32_u24 v5, 7168, v5
  v_add_u32 v6, v5, v6
  s_sub_u32 s21, s3, 1
  s_mul_i32 s21, s21, 57344
  s_mul_i32 s22, s18, 14336
  s_add_u32 s21, s21, s22
  s_lshl_b32 s22, s17, 8
  s_add_u32 s21, s21, s22
  s_add_u32 s21, s21, {FMB}""")
    for k in range(4): g(f"  v_add_u32 v{120+k}, 0x80, v{120+k}")
    g.put_tag(120, 120, 56)
    g("""
  s_mov_b32 exec_lo, 0x00ff00ff
  s_mov_b32 exec_hi, 0x00ff00ff
  buffer_store_dwordx4 v[120:123], v6, s[40:43], s21 offen sc1""")
    g.stamp(5)
    g.end()

def t_role(g):
    nt = g.nt
    g(f"""
L_T:
  s_load_dwordx2 s[8:9], s[0:1], 64
  s_load_dwordx2 s[12:13], s[0:1], 32
  s_load_dwordx2 s[16:17], s[0:1], 0
  s_load_dwordx2 s[20:21], s[0:1], 72
  s_mov_b32 s10, {1792*896}
  s_mov_b32 s11, 0x20000
  s_mov_b32 s14, {4096*896}
  s_mov_b32 s15, 0x20000
  s_mov_b32 s18, 1792
  s_mov_b32 s19, 0x20000
  s_mov_b32 s22, 1792
  s_mov_b32 s23, 0x20000
  s_sub_u32 s6, s3, 4            ; w
  s_lshr_b32 s24, s5, 2          ; R
  s_and_b32 s25, s5, 3           ; cg
  s_lshl_b32 s26, s4, 3
  s_add_u32 s26, s26, s24        ; Rg
  v_and_b32 v1, 15, v0           ; c
  v_lshrrev_b32 v2, 4, v0        ; g
  v_mul_u32_u24 v3, 3584, v2
  v_lshl_add_u32 v3, v1, 4, v3
  v_mov_b32 v4, {OOB}
  s_cmp_eq_u32 s25, 3
  s_cselect_b32 s27, 8, 16
  v_cmp_gt_u32 vcc, s27, v1
  v_cndmask_b32 v3, v4, v3, vcc
  s_lshl_b32 s28, s25, 8         ; cg*256
  s_lshl_b32 s29, s4, 1
  s_lshr_b32 s30, s24, 2
  s_add_u32 s29, s29, s30        ; head
  s_lshl_b32 s29, s29, 4
  s_and_b32 s31, s24, 3
  s_lshl_b32 s31, s31, 2
  s_add_u32 s31, s31, s6         ; dblock
  s_add_u32 s29, s29, s31
  s_mul_i32 s29, s29, {16*896}
  s_add_u32 s29, s29, s28
  s_lshr_b32 s32, s2, 4
  s_bfe_u32 s33, s2, 0x20002
  s_and_b32 s34, s2, 3
  s_cmp_lt_u32 s2, 48
  s_cbranch_scc1 L_T_k
  s_mov_b32 s32, 3
  s_bfe_u32 s33, s2, 0x20001
  s_and_b32 s34, s2, 1
L_T_k:
  s_lshr_b32 s35, s33, 1
  s_mul_i32 s35, s35, 896
  s_lshl_b32 s32, s32, 8
  s_add_u32 s35, s35, s32
  s_lshl_b32 s34, s34, 6
  s_add_u32 s35, s35, s34
  s_and_b32 s33, s33, 1
  s_lshl_b32 s33, s33, 3
  s_add_u32 s35, s35, s33
  v_and_b32 v5, 3, v0
  v_lshlrev_b32 v5, 4, v5
  v_add_u32 v5, s35, v5
  v_mov_b32 v96, 0
  v_mov_b32 v97, 0
  v_mov_b32 v98, 0
  v_mov_b32 v99, 0
  v_mov_b32 v10, v4
  s_mov_b32 s37, 0
  s_waitcnt lgkmcnt(0)
  s_load_dword s44, s[40:41], {EPOCH}
  buffer_load_dwordx2 v[6:7], v5, s[16:19], 0 offen
  s_cmp_ge_u32 s6, 2
  s_cbranch_scc1 L_T_noffn
  s_mul_i32 s30, s26, 28
  s_lshl_b32 s31, s6, 4
  s_add_u32 s30, s30, s31
  s_mul_i32 s31, s30, 896
  s_add_u32 s31, s31, s28
  s_cmp_eq_u32 s6, 1
  s_cselect_b32 s36, 3, 4
  v_cmp_gt_u32 vcc, s36, v2
  v_cndmask_b32 v8, v4, v3, vcc""")
    for q in range(4):
        g(f"  buffer_load_dwordx4 v[{64+4*q}:{67+4*q}], v8, s[8:11], s31 offen offset:{q*896} {nt}")
    g(f"""
  s_sub_u32 s36, s36, 1
  v_min_u32 v9, s36, v2
  s_lshr_b32 s30, s30, 2
  v_add_u32 v9, s30, v9
  v_lshrrev_b32 v10, 4, v9
  v_lshlrev_b32 v10, 8, v10
  v_and_b32 v11, 1, v9
  v_lshl_add_u32 v10, v11, 7, v10
  v_bfe_u32 v11, v9, 1, 3
  v_lshl_add_u32 v10, v11, 4, v10
  v_bfe_u32 v11, v0, 3, 1
  v_mul_u32_u24 v11, 7168, v11
  v_add_u32 v10, v10, v11
  v_and_b32 v11, 7, v0
  v_mul_u32_u24 v11, 14336, v11
  v_add_u32 v10, v10, v11
  s_mov_b32 s37, {FMB}
L_T_noffn:
  s_waitcnt lgkmcnt(0)""")
    g.tags()
    g.tagbytes(56)
    g.masks(48, 52, 53)
    g(f"""
  s_mov_b32 s63, 0
  s_cmp_ge_u32 s6, 2
  s_cbranch_scc1 L_T_s1
L_fpoll:
  buffer_load_dwordx4 v[32:35], v10, s[40:43], s37 offen sc1
  s_waitcnt vmcnt(0)""")
    g.check_tag(12, 32, 56, True)
    g.spin_tail(12, "L_fpoll", "L_fgot")
    g.stamp(1)
    for k in range(4): g(f"  v_and_b32 v{32+k}, s47, v{32+k}")
    vs = [32, 33, 34, 35]
    g.dpp("v_add_f32", vs, X1)
    g.dpp("v_add_f32", vs, X2)
    for k in range(4): g(f"  v_mov_b32_dpp v{36+k}, v{32+k} {X4} {DPPF}")
    g("  s_mov_b32 s48, 0x0f0f0f0f\n  s_mov_b32 s49, 0x0f0f0f0f")
    for k in range(4):
        g(f"  v_cndmask_b32 v{40+k}, v{36+k}, v{32+k}, s[48:49]   ; gate")
        g(f"  v_cndmask_b32 v{44+k}, v{32+k}, v{36+k}, s[48:49]   ; up")
    g("""
  v_cvt_pk_bf16_f32 v32, v40, v41
  v_cvt_pk_bf16_f32 v33, v42, v43
  v_cvt_pk_bf16_f32 v34, v44, v45
  v_cvt_pk_bf16_f32 v35, v46, v47""")
    for k in range(4):
        g(f"  v_lshlrev_b32 v{40+2*k}, 16, v{32+k}\n  v_and_b32 v{41+2*k}, 0xffff0000, v{32+k}")
    c1 = 0.044715 * 0.7978845608028654
    c0 = 0.7978845608028654
    k2 = -2.0 * 1.4426950408889634
    g(f"  v_mov_b32 v52, {c0:.10e}")
    for k in range(4): g(f"  v_mul_f32 v{32+k}, v{40+k}, v{40+k}")
    for k in range(4): g(f"  v_fmamk_f32 v{32+k}, v{32+k}, {c1:.10e}, v52")
    for k in range(4): g(f"  v_mul_f32 v{32+k}, v{32+k}, v{40+k}")
    for k in range(4): g(f"  v_mul_f32 v{32+k}, {k2:.10e}, v{32+k}")
    for k in range(4): g(f"  v_exp_f32 v{32+k}, v{32+k}")
    for k in range(4): g(f"  v_add_f32 v{32+k}, 1.0, v{32+k}")
    for k in range(4): g(f"  v_rcp_f32 v{32+k}, v{32+k}")
    for k in range(4): g(f"  v_mul_f32 v{32+k}, v{32+k}, v{40+k}")
    g("  v_cvt_pk_bf16_f32 v36, v32, v33\n  v_cvt_pk_bf16_f32 v37, v34, v35")
    for k in range(2):
        g(f"  v_lshlrev_b32 v{32+2*k}, 16, v{36+k}\n  v_and_b32 v{33+2*k}, 0xffff0000, v{36+k}")
    for k in range(4): g(f"  v_mul_f32 v{32+k}, v{32+k}, v{44+k}")
    for k in range(4): g(f"  v_cvt_pk_bf16_f32 v{36+k}, v{32+k}, v{32+k}")
    for q in range(4): g.frag(100 + 4 * q, 36 + q, 48)
    for q in range(4):
        g(f"  v_mfma_f32_16x16x32_bf16 v[96:99], v[{100+4*q}:{103+4*q}], v[{64+4*q}:{67+4*q}], v[96:99]")
    g(f"""
L_T_s1:
  v_and_b32 v11, 7, v0
  v_bfe_u32 v12, v0, 3, 1        ; batch
  v_lshlrev_b32 v13, 15, v12
  v_lshl_add_u32 v13, v11, 6, v13
  v_lshl_add_u32 v13, v2, 4, v13 ; o voffset
  v_lshlrev_b32 v14, 9, v12
  v_lshl_add_u32 v14, v11, 4, v14
  s_lshr_b32 s30, s24, 2         ; h
  s_lshl_b32 s36, s4, 16
  s_lshl_b32 s37, s30, 14
  s_add_u32 s36, s36, s37
  s_and_b32 s31, s24, 3
  s_lshl_b32 s31, s31, 2
  s_add_u32 s31, s31, s6
  s_lshl_b32 s31, s31, 10
  s_add_u32 s36, s36, s31
  s_add_u32 s36, s36, {MB1}
  s_lshl_b32 s37, s4, 10
  s_lshl_b32 s30, s30, 8
  s_add_u32 s37, s37, s30
  s_add_u32 s37, s37, {ML}
  v_lshlrev_b32 v15, 4, v0
  s_lshl_b32 s30, s6, 10
  s_add_u32 s30, s30, {TB}
  v_add_u32 v16, s30, v15
  v_mov_b32 v18, s44
  v_mov_b32 v19, s45
  s_mov_b32 s63, 0""")
    g.stamp(2)
    g("  s_waitcnt vmcnt(0)\n  s_barrier                      ; S1")
    for q in range(4):
        g(f"  buffer_load_dwordx4 v[{80+4*q}:{83+4*q}], v3, s[12:15], s29 offen offset:{q*896} {nt}")
    g.stamp(3)
    g("  s_barrier                      ; S2\n  s_barrier                      ; S3")
    g.stamp(4)
    g("""
L_opoll:
  buffer_load_dwordx4 v[32:35], v14, s[40:43], s37 offen sc1
  buffer_load_dwordx4 v[36:39], v14, s[40:43], s37 offen offset:128 sc1
  buffer_load_dwordx4 v[40:43], v13, s[40:43], s36 offen sc1
  buffer_load_dwordx4 v[44:47], v13, s[40:43], s36 offen offset:512 sc1
  s_waitcnt vmcnt(2)
  v_xor_b32 v17, v34, v18
  v_bitop3_b32 v17, v17, v35, v19 bitop3:0xf6
  v_bitop3_b32 v17, v17, v38, v18 bitop3:0xf6
  v_bitop3_b32 v17, v17, v39, v19 bitop3:0xf6
  s_waitcnt vmcnt(0)""")
    g.check_tag(20, 40, 56, True)
    g.check_tag(20, 44, 56, False)
    g("  v_and_or_b32 v17, v20, 0xff, v17" if False else "  v_and_b32 v20, 0xff, v20\n  v_or_b32 v17, v17, v20")
    g.spin_tail(17, "L_opoll", "L_ogot", mask=False)
    g.stamp(5)
    cexp = 1.4426950408889634 / 16
    g("  v_max_f32 v20, v32, v36")
    for c in (X1, X2, X4): g.dpp("v_max_f32", [20], c)
    for k in range(8): g(f"  v_and_b32 v{40+k}, s47, v{40+k}")
    g(f"""
  v_sub_f32 v32, v32, v20
  v_sub_f32 v36, v36, v20
  v_mul_f32 v32, {cexp:.10e}, v32
  v_mul_f32 v36, {cexp:.10e}, v36
  v_exp_f32 v32, v32
  v_exp_f32 v36, v36
  s_nop 0
  v_mul_f32 v21, v32, v33
  v_fmac_f32 v21, v36, v37""")
    for k in range(4): g(f"  v_mul_f32 v{40+k}, v{40+k}, v32")
    for k in range(4): g(f"  v_fmac_f32 v{40+k}, v{44+k}, v36")
    for c in (X1, X2, X4): g.dpp("v_add_f32", [21, 40, 41, 42, 43], c)
    g("  v_rcp_f32 v21, v21")
    for k in range(4): g(f"  v_mul_f32 v{40+k}, v{40+k}, v21")
    for k in range(4): g(f"  v_cvt_pk_bf16_f32 v{36+k}, v{40+k}, v{40+k}")
    for q in range(4): g.frag(100 + 4 * q, 36 + q, 48)
    for q in range(4):
        g(f"  v_mfma_f32_16x16x32_bf16 v[96:99], v[{100+4*q}:{103+4*q}], v[{80+4*q}:{83+4*q}], v[96:99]")
    g("""
  ds_write_b128 v16, v[96:99]
  s_waitcnt lgkmcnt(0)""")
    g.stamp(6)
    g(f"""
  s_barrier                      ; S4
  s_cmp_eq_u32 s6, 1
  s_cbranch_scc1 L_final
  s_cmp_lg_u32 s6, 0
  s_cbranch_scc1 L_exit""")
    for w in range(4):
        g(f"  ds_read_b128 v[{32+4*w}:{35+4*w}], v15 offset:{TB + w*1024}")
    g(f"""
  s_cmp_eq_u32 s25, 3
  s_cselect_b32 s30, 1, 2
  v_lshlrev_b32 v8, s30, v2
  v_lshrrev_b32 v9, 2, v1
  v_add_u32 v8, v8, v9
  v_mul_u32_u24 v8, {ST2}, v8
  v_and_b32 v9, 3, v1
  v_lshl_add_u32 v8, v9, 4, v8
  s_mul_i32 s30, s25, {16*ST2}
  s_lshl_b32 s31, s26, 6
  s_add_u32 s30, s30, s31
  s_add_u32 s30, s30, {MB2}
  s_cmp_eq_u32 s25, 3
  s_cselect_b32 s34, 0x00ff00ff, -1
  s_waitcnt lgkmcnt(0)""")
    for k in range(4):
        g(f"  v_add_f32 v{32+k}, v{32+k}, v{36+k}\n  v_add_f32 v{40+k}, v{40+k}, v{44+k}")
    for k in range(4): g(f"  v_add_f32 v{32+k}, v{32+k}, v{40+k}")
    g.put_tag(32, 32, 56)
    g("""
  s_mov_b32 exec_lo, s34
  s_mov_b32 exec_hi, s34
  buffer_store_dwordx4 v[32:35], v8, s[40:43], s30 offen sc1""")
    g.stamp(7)
    g.end()
    g(f"""
L_final:
  s_cmp_ge_u32 s2, 56
  s_cbranch_scc1 L_exit
  s_mul_i32 s30, s2, {ST2}
  s_add_u32 s30, s30, {MB2}
  s_mov_b32 s63, 0
L_rpoll:""")
    for n in range(4):
        g(f"  buffer_load_dwordx4 v[{32+4*n}:{35+4*n}], v15, s[40:43], s30 offen offset:{n*1024} sc1")
    for n in range(4):
        g(f"  s_waitcnt vmcnt({3-n})")
        g.check_tag(20, 32 + 4 * n, 56, n == 0)
    g.spin_tail(20, "L_rpoll", "L_rgot")
    g.stamp(7)
    for k in range(16): g(f"  v_and_b32 v{32+k}, s47, v{32+k}")
    for k in range(4):
        g(f"  v_add_f32 v{32+k}, v{32+k}, v{36+k}\n  v_add_f32 v{40+k}, v{40+k}, v{44+k}")
    for k in range(4): g(f"  v_add_f32 v{32+k}, v{32+k}, v{40+k}")
    vs = [32, 33, 34, 35]
    g.dpp("v_add_f32", vs, "row_ror:4")
    g.dpp("v_add_f32", vs, "row_ror:8")
    g.xswap_many("v_add_f32", vs, [36, 37, 38, 39], 16)
    g.xswap_many("v_add_f32", vs, [36, 37, 38, 39], 32)
    g("""
  v_lshlrev_b32 v36, 16, v6
  v_and_b32 v37, 0xffff0000, v6
  v_lshlrev_b32 v38, 16, v7
  v_and_b32 v39, 0xffff0000, v7""")
    for k in range(4): g(f"  v_add_f32 v{32+k}, v{32+k}, v{36+k}")
    g(f"""
  v_cvt_pk_bf16_f32 v36, v32, v33
  v_cvt_pk_bf16_f32 v37, v34, v35
  v_mov_b32 v8, s44
  v_mov_b32 v9, 0
  s_mov_b64 exec, 15
  buffer_store_dwordx2 v[36:37], v5, s[20:23], 0 offen
  s_cmp_lg_u32 s2, 0
  s_cbranch_scc1 L_exit
  s_mov_b64 exec, 1
  buffer_store_dword v8, v9, s[40:43], 0 offen offset:{EPOCH}""")
    g.stamp(8)
    g.end()

def tile_role(g):
    nt, nth = g.nt, g.nth
    g(f"""
L_tile:
  s_load_dwordx2 s[8:9], s[0:1], 8
  s_load_dwordx2 s[12:13], s[0:1], 16
  s_mov_b32 s10, 0x10000000
  s_mov_b32 s11, 0x20000
  s_mov_b32 s14, 0x10000000
  s_mov_b32 s15, 0x20000
  s_sub_u32 s6, s3, 8            ; tw
  s_lshr_b32 s16, s5, 4          ; batch
  s_and_b32 s17, s5, 15          ; split
  s_lshl_b32 s18, s16, 3
  s_add_u32 s18, s18, s4
  s_lshl_b32 s18, s18, 24
  s_lshl_b32 s19, s6, 4
  s_add_u32 s19, s19, s17
  s_lshl_b32 s19, s19, 13
  s_add_u32 s19, s19, s18
  s_add_u32 s19, s19, {WIN}      ; tile 0
  s_lshl_b32 s20, s6, 14
  v_lshrrev_b32 v1, 5, v0
  v_and_b32 v2, 31, v0
  v_lshlrev_b32 v3, 2, v1
  v_xor_b32 v2, v2, v3
  v_lshlrev_b32 v2, 4, v2
  v_lshl_add_u32 v8, v1, 9, v2""")
    for n in range(1, 8):
        g(f"  v_xor_b32 v{8+n}, {(8*(n&1) + (n>>1))*16}, v8")
    g("""
  v_lshrrev_b32 v2, 4, v0        ; g
  v_and_b32 v1, 15, v0           ; r / c
  v_lshlrev_b32 v16, 4, v1
  v_lshl_add_u32 v16, v2, 9, v16 ; V voffset
  s_mov_b32 m0, s20
  s_add_u32 s21, s19, 4096
  s_add_u32 s22, s19, 0x100000
  s_add_u32 s23, s19, 0x101000
  s_waitcnt lgkmcnt(0)
  s_load_dword s44, s[40:41], 0""")
    soff = ["s19", "s21", "s22", "s23"]
    cnt = 0
    def thr():
        nonlocal cnt
        if nth and cnt >= nth: g(f"  s_waitcnt vmcnt({nth-1})")
        cnt += 1
    for tp in range(2):
        for n in range(8):
            if n in (0, 4) and (tp, n) != (0, 0):
                g(f"  s_add_u32 m0, s20, {tp*8192 + (n>>2)*4096}")
            thr()
            g(f"  buffer_load_dwordx4 v{8+n}, s[8:11], {soff[tp*2 + (n>>2)]} offen offset:{(n&3)*1024} {nt} lds")
    g.stamp(1)
    for tp in range(2):
        for t in range(4):
            for hf in range(2):
                r = 64 + tp * 32 + t * 8 + hf * 4
                thr()
                g(f"  buffer_load_dwordx4 v[{r}:{r+3}], v16, s[12:15], {soff[tp*2 + (t>>1)]} offen offset:{(t&1)*2048 + hf*256} {nt}")
    g.stamp(2)
    g(f"""
  v_and_b32 v3, 3, v1
  v_lshrrev_b32 v4, 2, v1
  v_lshlrev_b32 v5, 11, v3
  v_lshl_add_u32 v5, v4, 9, v5
  v_lshl_add_u32 v5, v4, 6, v5
  v_xor_b32 v3, v3, v2
  v_lshl_add_u32 v5, v3, 4, v5
  v_add_u32 v4, s20, v5
  v_xor_b32 v5, 64, v4
  v_xor_b32 v6, 0x80, v4
  v_xor_b32 v7, 0xc0, v4
  v_lshrrev_b32 v1, 3, v1        ; head
  v_mul_u32_u24 v3, {HS}, v1
  v_lshl_add_u32 v3, v2, 4, v3
  v_add_u32 v3, {QB}, v3
  s_waitcnt vmcnt(16) lgkmcnt(0)
  s_barrier                      ; S1""")
    g.stamp(3, wait=True)
    def kread(t, tp):
        r = 48 + ((t & 1) * 2 + tp) * 4
        g(f"  ds_read_b128 v[{r}:{r+3}], v{4+(t&3)} offset:{(t>>2)*256 + tp*8192}")
    def qread(t):
        g(f"  ds_read_b128 v[{16+4*t}:{19+4*t}], v3 offset:{t*64}")
    qread(0); kread(0, 0); kread(0, 1); qread(1); kread(1, 0); kread(1, 1)
    for t in range(2, 8): qread(t)
    waits = [9, 8, 2, 2, 2, 2, 2, 0]
    for t in range(8):
        g(f"  s_waitcnt lgkmcnt({waits[t]})")
        for tp in range(2):
            r = 48 + ((t & 1) * 2 + tp) * 4
            c = "0" if t == 0 else f"v[{8+4*tp}:{11+4*tp}]"
            g(f"  v_mfma_f32_16x16x32_bf16 v[{8+4*tp}:{11+4*tp}], v[{r}:{r+3}], v[{16+4*t}:{19+4*t}], {c}")
        if t + 2 < 8:
            kread(t + 2, 0); kread(t + 2, 1)
    g(f"""
  v_lshlrev_b32 v4, 5, v1
  s_lshl_b32 s21, s6, 2
  s_add_u32 s21, s21, {MXB}
  v_add_u32 v5, s21, v4
  v_add_u32 v4, {MXB}, v4""")
    for k in range(4): g(f"  v_cvt_pk_bf16_f32 v{16+k}, v{8+2*k}, v{9+2*k}")
    for k in range(4): g(f"  v_lshlrev_b32 v{8+2*k}, 16, v{16+k}\n  v_and_b32 v{9+2*k}, 0xffff0000, v{16+k}")
    g("""
  v_max3_f32 v6, v8, v9, v10
  v_max3_f32 v7, v11, v12, v13
  v_max3_f32 v6, v6, v14, v15
  v_max_f32 v6, v6, v7""")
    g.xswap("v_max_f32", 6, 7, 32)
    g.xswap("v_max_f32", 6, 7, 16)
    g("""
  s_mov_b64 exec, 0x101
  ds_write_b32 v5, v6
  s_mov_b64 exec, -1""")
    g.masks(20, 24, 25)
    g(f"""
  v_mov_b32 v7, {MODE}
  s_waitcnt lgkmcnt(0)
  s_barrier                      ; S2""")
    g.stamp(4, wait=True)
    cexp = 1.4426950408889634 / 16
    g(f"""
  ds_read_b128 v[24:27], v4
  ds_read_b128 v[28:31], v4 offset:16
  ds_read_b32 v7, v7
  s_waitcnt lgkmcnt(1)
  v_max3_f32 v6, v24, v25, v26
  v_max3_f32 v2, v27, v28, v29
  v_max3_f32 v6, v6, v30, v31
  v_max_f32 v6, v6, v2""")
    for k in range(8): g(f"  v_sub_f32 v{8+k}, v{8+k}, v6")
    for k in range(8): g(f"  v_mul_f32 v{8+k}, {cexp:.10e}, v{8+k}")
    for k in range(8): g(f"  v_exp_f32 v{8+k}, v{8+k}")
    g("""
  s_waitcnt lgkmcnt(0)
  v_readfirstlane_b32 s24, v7
  v_add_f32 v2, v8, v9
  v_add_f32 v3, v10, v11
  v_add_f32 v16, v12, v13
  v_add_f32 v17, v14, v15
  v_add_f32 v2, v2, v3
  v_add_f32 v16, v16, v17
  v_add_f32 v2, v2, v16""")
    g.xswap("v_add_f32", 2, 3, 32)
    g.xswap("v_add_f32", 2, 3, 16)
    g("""
  s_mov_b64 exec, 0x101
  ds_write_b32 v5, v2 offset:64
  s_mov_b64 exec, -1""")
    for k in range(8): g(f"  v_cvt_pk_bf16_f32 v{8+k}, v{8+k}, v{8+k}")
    for k in range(8): g.frag(24 + 4 * k, 8 + k, 20)
    g(f"""
  v_and_b32 v2, 15, v0
  v_lshlrev_b32 v2, 5, v2
  v_bfe_u32 v3, v0, 4, 1
  v_lshl_add_u32 v2, v3, 4, v2
  v_lshrrev_b32 v3, 5, v0
  v_lshl_add_u32 v2, v3, 9, v2
  s_lshl_b32 s21, s6, 11
  v_add_u32 v2, s21, v2""")
    g.tags()
    g.stamp(5)
    for tp in range(2):
        for t in range(4):
            left = 16 - (tp * 8 + 2 * t + 2)
            if tp == 1 or t == 3 or True:
                g(f"  s_waitcnt vmcnt({left})")
            for hf in range(2):
                r = 64 + tp * 32 + t * 8 + hf * 4
                a = 24 + (tp * 4 + t) * 4
                acc = 56 + hf * 4
                c = "0" if (tp, t) == (0, 0) else f"v[{acc}:{acc+3}]"
                g(f"  v_mfma_f32_16x16x32_bf16 v[{acc}:{acc+3}], v[{a}:{a+3}], v[{r}:{r+3}], {c}")
    g.stamp(6)
    g(f"""
  ds_write_b128 v2, v[56:59] offset:{OB}
  ds_write_b128 v2, v[60:63] offset:{OB+1024}
  s_waitcnt lgkmcnt(0)
  s_barrier                      ; S3""")
    g.stamp(7, wait=True)
    g(f"""
  s_cmp_ge_u32 s6, 3
  s_cbranch_scc1 L_exit
  s_cmp_eq_u32 s6, 2
  s_cbranch_scc1 L_tile_ml
  s_lshl_b32 s21, s6, 10
  v_lshlrev_b32 v2, 4, v0
  v_add_u32 v2, s21, v2""")
    for w in range(8):
        g(f"  ds_read_b128 v[{64+4*w}:{67+4*w}], v2 offset:{OB + w*2048}")
    g.tagbytes(16)
    g(f"""
  v_lshrrev_b32 v3, 5, v0
  v_lshlrev_b32 v3, 14, v3
  v_bfe_u32 v4, v0, 2, 3
  v_lshl_add_u32 v3, v4, 10, v3
  v_and_b32 v4, 3, v0
  v_lshl_add_u32 v3, v4, 4, v3
  s_lshl_b32 s21, s4, 16
  s_lshl_b32 s22, s16, 15
  s_add_u32 s21, s21, s22
  s_lshl_b32 s22, s6, 13
  s_add_u32 s21, s21, s22
  s_lshl_b32 s22, s17, 6
  s_add_u32 s21, s21, s22
  s_add_u32 s21, s21, {MB1}""")
    for p in range(4):
        g(f"  s_waitcnt lgkmcnt({6-2*p})")
        for k in range(4): g(f"  v_add_f32 v{64+8*p+k}, v{64+8*p+k}, v{68+8*p+k}")
        if p & 1:
            for k in range(4): g(f"  v_add_f32 v{56+8*p+k}, v{56+8*p+k}, v{64+8*p+k}")
    for k in range(4): g(f"  v_add_f32 v{64+k}, v{64+k}, v{80+k}")
    g.put_tag(64, 64, 16)
    g("""
  s_cmp_eq_u32 s24, 1
  s_cbranch_scc1 L_tile_local
  buffer_store_dwordx4 v[64:67], v3, s[40:43], s21 offen sc1""")
    g.stamp(8)
    g.end()
    g("""
L_tile_local:
  buffer_store_dwordx4 v[64:67], v3, s[40:43], s21 offen""")
    g.stamp(8)
    g.end()
    g(f"""
L_tile_ml:
  ds_read_b128 v[24:27], v4 offset:64
  ds_read_b128 v[28:31], v4 offset:80
  s_lshl_b32 s21, s4, 10
  s_lshl_b32 s22, s16, 9
  s_add_u32 s21, s21, s22
  s_lshl_b32 s22, s17, 4
  s_add_u32 s21, s21, s22
  s_add_u32 s21, s21, {ML}
  v_lshlrev_b32 v3, 8, v1
  v_mov_b32 v8, v6
  v_mov_b32 v10, s44
  v_mov_b32 v11, s45
  s_waitcnt lgkmcnt(0)
  v_add_f32 v24, v24, v25
  v_add_f32 v26, v26, v27
  v_add_f32 v28, v28, v29
  v_add_f32 v30, v30, v31
  v_add_f32 v24, v24, v26
  v_add_f32 v28, v28, v30
  v_add_f32 v9, v24, v28
  s_mov_b64 exec, 0x101
  s_cmp_eq_u32 s24, 1
  s_cbranch_scc1 L_tile_ml_local
  buffer_store_dwordx4 v[8:11], v3, s[40:43], s21 offen sc1""")
    g.end()
    g("""
L_tile_ml_local:
  buffer_store_dwordx4 v[8:11], v3, s[40:43], s21 offen""")
    g.end()

def gen(nth=3, stamps=False, nt="nt"):
    g = G(nth=nth, stamps=stamps, ntflag=nt)
    g(f"""
  s_cmp_ge_u32 s2, 256
  s_cbranch_scc1 L_exit0""")
    if stamps:
        for k in range(13): g(f"  s_mov_b32 s{64+2*k-(1 if k==12 else 0)*25}, 0" if k < 12 else "  s_mov_b32 s63, 0")
    g.stamp(0)
    g(f"""
  v_lshrrev_b32 v1, 6, v0
  s_load_dwordx2 s[40:41], s[0:1], 88
  v_and_b32 v0, 63, v0
  v_readfirstlane_b32 s3, v1
  s_and_b32 s4, s2, 7            ; hkv
  s_lshr_b32 s5, s2, 3
  s_mov_b32 s42, 0x400000
  s_mov_b32 s43, 0x20000
  s_cmp_ge_u32 s3, 8
  s_cbranch_scc1 L_tile
  s_cmp_ge_u32 s3, 4
  s_cbranch_scc1 L_T
  s_cmp_eq_u32 s3, 3
  s_cbranch_scc1 L_exit""")
    unit_role(g)
    t_role(g)
    tile_role(g)
    g("L_exit:")
    g.end()
    g("L_exit0:\n  s_endpgm")
    body, added, problems = hazard.fix(g.text())
    for p in problems: print("HAZARD on taken branch:", p, file=sys.stderr)
    pre = open("cdna_kernels/" + NAME + ".s.ref").read().split("; Override launch")[0]
    txt = pre + HEADER + f"; @launch grid=(256,1,1) block=(1024,1,1) lds={LDS}\n" + f""".amdgcn_target "amdgcn-amd-amdhsa--gfx950"
.text
.globl {NAME}_kernel
.p2align 8
.type {NAME}_kernel,@function
{NAME}_kernel:
""" + body + f"""
.section .rodata,"a"
.p2align 6
.amdhsa_kernel {NAME}_kernel
  .amdhsa_next_free_vgpr 128
  .amdhsa_next_free_sgpr 96
  .amdhsa_accum_offset 128
  .amdhsa_group_segment_fixed_size 0
  .amdhsa_kernarg_size 96
  .amdhsa_user_sgpr_count 2
  .amdhsa_user_sgpr_kernarg_segment_ptr 1
  .amdhsa_system_sgpr_workgroup_id_x 1
  .amdhsa_float_denorm_mode_32 3
.end_amdhsa_kernel
"""
    return txt

if __name__ == "__main__":
    import argparse
    ap = argparse.ArgumentParser()
    ap.add_argument("out"); ap.add_argument("--nth", type=int, default=3); ap.add_argument("--stamps", action="store_true")
    a = ap.parse_args()
    open(a.out, "w").write(gen(nth=a.nth, stamps=a.stamps))
```
